```python
import torch

def _softmax(x, axis=-1):
    return torch.softmax(x, dim=axis)
def _gelu(x):
    return torch.nn.functional.gelu(x, approximate="tanh")
def _silu(x):
    return torch.nn.functional.silu(x)
def _sigmoid(x):
    return torch.sigmoid(x)
def _layernorm(x, axis=-1, eps=1e-5):
    m = x.mean(dim=axis, keepdim=True)
    v = x.var(dim=axis, keepdim=True, unbiased=False)
    return (x - m) / torch.sqrt(v + eps)
def _scatter_add(tgt, idx, src, axis=0):
    return tgt.clone().index_add_(axis, idx, src)
def _segment_sum(src, seg, n):
    out = torch.zeros((n,) + src.shape[1:], dtype=src.dtype)
    return out.index_add_(0, seg, src)
def _pad(x, pw):
    flat = tuple(v for pair in reversed(pw) for v in pair)
    return torch.nn.functional.pad(x, flat)

kernel_name = 'recurrent_scan__gqa_block_cached__dense_activation_relu__decode'

def setup_inputs():

    _w = (lambda a: (lambda t: t.to(torch.bfloat16) if t.is_floating_point() else t)(torch.as_tensor(a)))
    def _A_setup():
        B, Sq, D = 1, 1, 512
        Hq, Hkv, Sk, Dh = 32, 8, 65536, 128
        assert Hq % Hkv == 0, (Hq, Hkv)
        return {
            "x": _w((lambda *s: torch.randn(*s, dtype=torch.bfloat16) * 0.05)(B, Sq, D)),
            "k_cache": _w((lambda *s: torch.randn(*s, dtype=torch.bfloat16) * 0.8)(B, Hkv, Sk, Dh)),
            "v_cache": _w((lambda *s: torch.randn(*s, dtype=torch.bfloat16) * 0.8)(B, Hkv, Sk, Dh)),
            "wq": _w((lambda *s: torch.randn(*s, dtype=torch.bfloat16) * 0.8)(D, Hq * Dh) * (D ** -0.5)),
            "wo": _w((lambda *s: torch.randn(*s, dtype=torch.bfloat16) * 0.8)(Hq * Dh, D) * ((Hq * Dh) ** -0.5)),
        }
    _A_in = _A_setup()

    def _B_setup():
        B, S, D, Dff = 1, 1, 512, 1792
        return {
            "x": _w((lambda *s: torch.randn(*s, dtype=torch.bfloat16) * 0.05)(B, S, D)),
            "w1": _w((lambda *s: torch.randn(*s, dtype=torch.bfloat16) * 0.2)(D, Dff)),
            "w2": _w((lambda *s: torch.randn(*s, dtype=torch.bfloat16) * 0.2)(Dff, D)),
        }
    _B_in = _B_setup()

    return {
        "A_x": _A_in["x"],
        "A_k_cache": _A_in["k_cache"],
        "A_v_cache": _A_in["v_cache"],
        "A_wq": _A_in["wq"],
        "A_wo": _A_in["wo"],
        "B_x": _B_in["x"],
        "B_w1": _B_in["w1"],
        "B_w2": _B_in["w2"],
    }

def reference(A_x, A_k_cache, A_v_cache, A_wq, A_wo, B_x, B_w1, B_w2):
    def _A_ref(x, k_cache, v_cache, wq, wo):
        B, Sq, D = x.shape
        Hq, Dh = 32, 128
        Hkv = k_cache.shape[1]
        rep = Hq // Hkv
        q = (lambda x, *d: x.permute(*d))((x @ wq).reshape(B, Sq, Hq, Dh), 0, 2, 1, 3)
        k = (lambda x, n, axis: torch.repeat_interleave(x, n, dim=axis))(k_cache, rep, axis=1)
        v = (lambda x, n, axis: torch.repeat_interleave(x, n, dim=axis))(v_cache, rep, axis=1)
        scores = torch.einsum("bhqd,bhkd->bhqk", q, k) * (Dh ** -0.5)
        p = _softmax(scores, axis=-1)
        o = torch.einsum("bhqk,bhkd->bhqd", p, v)
        return (lambda x, *d: x.permute(*d))(o, 0, 2, 1, 3).reshape(B, Sq, Hq * Dh) @ wo

    def _B_ref(x, w1, w2):
        h = torch.einsum("bsd,df->bsf", x, w1)
        zero = torch.zeros_like(h)
        h = torch.maximum(h, zero)
        return torch.einsum("bsf,fd->bsd", h, w2)

    x = A_x
    xn = _layernorm(x, axis=-1)
    s = _A_ref(xn, A_k_cache, A_v_cache, A_wq, A_wo)
    g = _silu(_B_ref(xn, B_w1, B_w2))
    return x + s * g
```

```python
import sys
NAME = "recurrent_scan__gqa_block_cached__dense_activation_relu__decode"
def gen(W=8, NB=4, kpat=0, vpat=0, nt=False, interleave=True, sc=""):
    keys_per_wg = 2048
    iters = keys_per_wg // 16 // W
    assert iters % NB == 0 or True
    flag = (" nt" if nt else "") + sc
    L = []
    A = L.append
    A(f"; @launch grid=(256,1,1) block=({W*64},1,1) lds=0")
    A('.amdgcn_target "amdgcn-amd-amdhsa--gfx950"')
    A(".text"); A(f".globl {NAME}_kernel"); A(".p2align 8"); A(f".type {NAME}_kernel,@function"); A(f"{NAME}_kernel:")
    A("s_cmp_ge_u32 s2, 256"); A("s_cbranch_scc1 L_end")
    A("s_load_dwordx4 s[4:7], s[0:1], 8")
    A("s_load_dwordx2 s[20:21], s[0:1], 80")
    A("s_memrealtime s[24:25]")
    A("v_and_b32 v1, 63, v0")
    A("v_lshrrev_b32 v2, 6, v0")
    A("s_nop 0"); A("v_readfirstlane_b32 s3, v2")
    def pat(p, dst):
        if p == 0:
            A(f"v_lshlrev_b32 {dst}, 4, v1")
            return [0, 1024, 2048, 3072]
        if p == 1:
            A(f"v_and_b32 v3, 15, v1"); A(f"v_lshlrev_b32 v3, 8, v3")
            A(f"v_lshrrev_b32 v4, 4, v1"); A(f"v_lshlrev_b32 v4, 4, v4")
            A(f"v_add_u32 {dst}, v3, v4")
            return [0, 64, 128, 192]
        if p == 2:
            A(f"v_bfe_u32 v3, v1, 2, 2"); A(f"v_lshlrev_b32 v3, 8, v3")
            A(f"v_lshrrev_b32 v4, 4, v1"); A(f"v_lshlrev_b32 v4, 6, v4")
            A(f"v_add_u32 v3, v3, v4")
            A(f"v_and_b32 v4, 3, v1"); A(f"v_lshlrev_b32 v4, 4, v4")
            A(f"v_add_u32 {dst}, v3, v4")
            return [0, 1024, 2048, 3072]
        if p == 3:
            A(f"v_lshrrev_b32 v3, 4, v1"); A(f"v_lshlrev_b32 v3, 10, v3")
            A(f"v_and_b32 v4, 15, v1"); A(f"v_lshlrev_b32 v4, 4, v4")
            A(f"v_add_u32 {dst}, v3, v4")
            return [0, 256, 512, 768]
    ko = pat(kpat, "v5"); vo = pat(vpat, "v6")
    A("s_and_b32 s8, s2, 7"); A("s_lshl_b32 s8, s8, 24")
    A("s_lshr_b32 s9, s2, 3"); A("s_lshl_b32 s9, s9, 19")
    A("s_add_u32 s8, s8, s9")
    if interleave:
        A("s_lshl_b32 s9, s3, 12")
        step = 4096 * W
    else:
        A(f"s_mul_i32 s9, s3, {iters*4096}")
        step = 4096
    A("s_add_u32 s8, s8, s9")
    A("s_waitcnt lgkmcnt(0)")
    A("s_mov_b32 s12, s4"); A("s_mov_b32 s13, s5"); A("s_mov_b32 s14, 0x8000000"); A("s_mov_b32 s15, 0x20000")
    A("s_mov_b32 s16, s6"); A("s_mov_b32 s17, s7"); A("s_mov_b32 s18, 0x8000000"); A("s_mov_b32 s19, 0x20000")
    A("v_mov_b32 v7, 0")
    base = 8
    def issue(b):
        r = base + b * 32
        for j in range(4):
            A(f"buffer_load_dwordx4 v[{r+j*4}:{r+j*4+3}], v5, s[12:15], s8 offen offset:{ko[j]}{flag}")
        for j in range(4):
            A(f"buffer_load_dwordx4 v[{r+16+j*4}:{r+16+j*4+3}], v6, s[16:19], s8 offen offset:{vo[j]}{flag}")
        A(f"s_add_u32 s8, s8, {step}")
    def consume(b):
        r = base + b * 32
        for j in range(0, 32, 4):
            A(f"v_xor_b32 v7, v7, v{r+j}")
    for b in range(NB): issue(b)
    nloop = (iters - NB) // NB
    rem = (iters - NB) % NB
    if nloop > 0:
        A(f"s_mov_b32 s10, {nloop}")
        A("L_loop:")
        for b in range(NB):
            A(f"s_waitcnt vmcnt({8*(NB-1)})")
            consume(b); issue(b)
        A("s_sub_u32 s10, s10, 1"); A("s_cmp_lg_u32 s10, 0"); A("s_cbranch_scc1 L_loop")
    order = list(range(NB))
    for b in range(rem):
        A(f"s_waitcnt vmcnt({8*(NB-1)})"); consume(b); issue(b)
    order = order[rem:] + order[:rem]
    for i, b in enumerate(order):
        A(f"s_waitcnt vmcnt({8*(NB-1-i)})"); consume(b)
    A("s_memrealtime s[26:27]")
    A("s_mov_b32 s22, 0x20000000"); A("s_mov_b32 s23, 0x20000")
    A(f"s_mul_i32 s9, s2, {W*256}")
    A("v_lshlrev_b32 v3, 2, v0")
    A("buffer_store_dword v7, v3, s[20:23], s9 offen")
    A("s_barrier")
    A("s_memrealtime s[26:27]")
    A("s_waitcnt lgkmcnt(0)")
    A("v_mov_b32 v8, s24"); A("v_mov_b32 v9, s25"); A("v_mov_b32 v10, s26"); A("v_mov_b32 v11, s27")
    A("s_lshl_b32 s9, s2, 6"); A("s_add_u32 s9, s9, 0x10000000")
    A("v_mov_b32 v3, 0")
    A("v_cmp_eq_u32 vcc, 0, v0"); A("s_and_saveexec_b64 s[28:29], vcc"); A("s_cbranch_execz L_end")
    A("buffer_store_dwordx4 v[8:11], v3, s[20:23], s9 offen")
    A("L_end:")
    A("s_endpgm")
    nv = base + NB * 32
    A('.section .rodata,"a"'); A(".p2align 6"); A(f".amdhsa_kernel {NAME}_kernel")
    A(f"  .amdhsa_next_free_vgpr {nv}"); A("  .amdhsa_next_free_sgpr 40"); A(f"  .amdhsa_accum_offset {min(256,(nv+3)//4*4)}")
    A("  .amdhsa_group_segment_fixed_size 0"); A("  .amdhsa_kernarg_size 88"); A("  .amdhsa_user_sgpr_count 2")
    A("  .amdhsa_user_sgpr_kernarg_segment_ptr 1"); A("  .amdhsa_system_sgpr_workgroup_id_x 1"); A(".end_amdhsa_kernel")
    return "\n".join(L) + "\n"

if __name__ == "__main__":
    cfgs = {
      "s_w8_nb4_p00": dict(W=8, NB=4, kpat=0, vpat=0),
      "s_w8_nb4_p00_nt": dict(W=8, NB=4, kpat=0, vpat=0, nt=True),
      "s_w8_nb4_p13": dict(W=8, NB=4, kpat=1, vpat=3),
      "s_w8_nb4_p13_nt": dict(W=8, NB=4, kpat=1, vpat=3, nt=True),
      "s_w8_nb4_p20": dict(W=8, NB=4, kpat=2, vpat=0),
      "s_w8_nb4_p20_nt": dict(W=8, NB=4, kpat=2, vpat=0, nt=True),
      "s_w8_nb2_p00_nt": dict(W=8, NB=2, kpat=0, vpat=0, nt=True),
      "s_w8_nb7_p00_nt": dict(W=8, NB=7, kpat=0, vpat=0, nt=True),
      "s_w16_nb2_p00_nt": dict(W=16, NB=2, kpat=0, vpat=0, nt=True),
      "s_w16_nb3_p00_nt": dict(W=16, NB=3, kpat=0, vpat=0, nt=True),
      "s_w4_nb4_p00_nt": dict(W=4, NB=4, kpat=0, vpat=0, nt=True),
      "s_w4_nb7_p00_nt": dict(W=4, NB=7, kpat=0, vpat=0, nt=True),
      "s_w8_nb4_p00_nt_sep": dict(W=8, NB=4, kpat=0, vpat=0, nt=True, interleave=False),
    }
    for n, c in cfgs.items():
        open(n + ".s", "w").write(gen(**c))
    print(" ".join(n + ".s" for n in cfgs))
```

```python
from gen_stream import gen
cfgs = {
  "t_nt": dict(W=8, NB=4, kpat=1, vpat=3, nt=True),
  "t_nt_sc1": dict(W=8, NB=4, kpat=1, vpat=3, nt=True, sc=" sc1"),
  "t_nt_sc0": dict(W=8, NB=4, kpat=1, vpat=3, nt=True, sc=" sc0"),
  "t_nt_sc0sc1": dict(W=8, NB=4, kpat=1, vpat=3, nt=True, sc=" sc0 sc1"),
  "t_sc1": dict(W=8, NB=4, kpat=1, vpat=3, nt=False, sc=" sc1"),
  "t_sc0sc1": dict(W=8, NB=4, kpat=1, vpat=3, nt=False, sc=" sc0 sc1"),
  "t_nt_nb2": dict(W=8, NB=2, kpat=1, vpat=3, nt=True),
  "t_nt_nb1": dict(W=8, NB=1, kpat=1, vpat=3, nt=True),
  "t_nt_w4nb2": dict(W=4, NB=2, kpat=1, vpat=3, nt=True),
  "t_nt_w4nb1": dict(W=4, NB=1, kpat=1, vpat=3, nt=True),
}
for n, c in cfgs.items():
    open(n + ".s", "w").write(gen(**c))
print(" ".join(n + ".s" for n in cfgs))
print(", ".join('"dev/' + n + '.s"' for n in cfgs))
```
